```python
import torch

def _softmax(x, axis=-1):
    return torch.softmax(x, dim=axis)

def _gelu(x):
    return torch.nn.functional.gelu(x, approximate='tanh')

def _silu(x):
    return torch.nn.functional.silu(x)

def _sigmoid(x):
    return torch.sigmoid(x)

def _layernorm(x, axis=-1, eps=1e-05):
    m = x.mean(dim=axis, keepdim=True)
    v = x.var(dim=axis, keepdim=True, unbiased=False)
    return (x - m) / torch.sqrt(v + eps)

def _scatter_add(tgt, idx, src, axis=0):
    return tgt.clone().index_add_(axis, idx, src)

def _segment_sum(src, seg, n):
    out = torch.zeros((n,) + src.shape[1:], dtype=src.dtype)
    return out.index_add_(0, seg, src)

def _pad(x, pw):
    flat = tuple((v for pair in reversed(pw) for v in pair))
    return torch.nn.functional.pad(x, flat)
kernel_name = 'sequential_preLN__memory_aug_recurrent_mem_tr__glu_gated_reglu__prompt'

def setup_inputs():

    _w = lambda a: (lambda t: t.to(torch.bfloat16) if t.is_floating_point() else t)(torch.as_tensor(a))

    def _A_setup():
        B, S, Dm = (1, 2048, 640)
        H, Dh = (32, 128)
        M, seg = (8, 32)
        seg = min(seg, S)
        S = S // seg * seg
        return {'x': _w((lambda *s: torch.randn(*s, dtype=torch.bfloat16) * 0.05)(B, S, Dm)), 'mem0': _w((lambda *s: torch.randn(*s, dtype=torch.bfloat16) * 0.2)(B, M, Dm)), 'Wq': _w((lambda *s: torch.randn(*s, dtype=torch.bfloat16) * 1.6)(Dm, H, Dh) * Dm ** (-0.5)), 'Wk': _w((lambda *s: torch.randn(*s, dtype=torch.bfloat16) * 1.6)(Dm, H, Dh) * Dm ** (-0.5)), 'Wv': _w((lambda *s: torch.randn(*s, dtype=torch.bfloat16) * 0.2)(Dm, H, Dh) * Dm ** (-0.5)), 'Wo': _w((lambda *s: torch.randn(*s, dtype=torch.bfloat16) * 0.2)(H, Dh, Dm) * (H * Dh) ** (-0.5)), 'seg_len': seg}
    _A_in = _A_setup()

    def _B_setup():
        B, S, D, F = (1, 2048, 640, 1728)
        return {'x': _w((lambda *s: torch.randn(*s, dtype=torch.bfloat16) * 0.05)(B, S, D)), 'W_gate': _w((lambda *s: torch.randn(*s, dtype=torch.bfloat16) * 0.2)(D, F) * (2.0 / D) ** 0.5), 'W_up': _w((lambda *s: torch.randn(*s, dtype=torch.bfloat16) * 0.2)(D, F) * (2.0 / D) ** 0.5), 'W_down': _w((lambda *s: torch.randn(*s, dtype=torch.bfloat16) * 0.2)(F, D) * (1.0 / F) ** 0.5)}
    _B_in = _B_setup()
    return {'A_x': _A_in['x'], 'A_mem0': _A_in['mem0'], 'A_Wq': _A_in['Wq'], 'A_Wk': _A_in['Wk'], 'A_Wv': _A_in['Wv'], 'A_Wo': _A_in['Wo'], 'A_seg_len': _A_in['seg_len'], 'B_x': _B_in['x'], 'B_W_gate': _B_in['W_gate'], 'B_W_up': _B_in['W_up'], 'B_W_down': _B_in['W_down']}

def reference(A_x, A_mem0, A_Wq, A_Wk, A_Wv, A_Wo, A_seg_len, B_x, B_W_gate, B_W_up, B_W_down):

    def _A_ref(x, mem0, Wq, Wk, Wv, Wo, seg_len):
        B, S, Dm = x.shape
        H, Dh = (Wq.shape[1], Wq.shape[2])
        M = mem0.shape[1]
        scale = Dh ** (-0.5)
        n_seg = S // seg_len
        L = M + seg_len
        idx = torch.arange(L)
        mask = (idx[:, None] < M) | (idx[:, None] >= idx[None, :])
        mem = mem0
        outs = []
        for s in range(n_seg):
            xs = x[:, s * seg_len:(s + 1) * seg_len, :].clone()
            h = torch.concatenate([mem, xs], axis=1)
            q = torch.einsum('btd,dhe->bhte', h, Wq)
            k = torch.einsum('btd,dhe->bhte', h, Wk)
            v = torch.einsum('btd,dhe->bhte', h, Wv)
            scores = torch.einsum('bhqe,bhke->bhqk', q, k) * scale
            scores = torch.where(mask[None, None], scores, -1000000000.0)
            p = _softmax(scores, axis=-1)
            o = torch.einsum('bhqk,bhke->bhqe', p, v)
            o = torch.einsum('bhte,hed->btd', o, Wo)
            mem = o[:, :M, :].clone()
            outs.append(o[:, M:, :])
        return torch.concatenate(outs, axis=1)

    def _B_ref(x, W_gate, W_up, W_down):
        gate = torch.einsum('bsd,df->bsf', x, W_gate)
        up = torch.einsum('bsd,df->bsf', x, W_up)
        gate = gate * (lambda x, dt: x.to(dt))(gate > 0, gate.dtype)
        h = gate * up
        return torch.einsum('bsf,fd->bsd', h, W_down)
    x = A_x
    h = x + _A_ref(_layernorm(x, axis=-1), A_mem0, A_Wq, A_Wk, A_Wv, A_Wo, A_seg_len)
    h2 = h + _B_ref(_layernorm(h, axis=-1), B_W_gate, B_W_up, B_W_down)
    return h2
```

```python
import sys

NAME = "sequential_preLN__memory_aug_recurrent_mem_tr__glu_gated_reglu__prompt"

KiB = 1024
MiB = 1024 * 1024
off = 0
def alloc(n):
    global off
    o = off
    off += (n + 4095) // 4096 * 4096
    return o

XN = alloc(32 * 20 * 4096)
WQKV = alloc(192 * 20 * 4096)
WO = alloc(10 * 128 * 4096)
WGU = alloc(54 * 20 * 4096)
WD = alloc(10 * 54 * 4096)
QX = alloc(64 * 32 * 8 * 1024)
KX = alloc(64 * 32 * 8 * 1024)
VX = alloc(64 * 32 * 8 * 1024)
MEM = alloc(65 * 10240 + 4 * MiB)
OM = MEM + 65 * 10240
KM = alloc(64 * 32 * 4 * 512)
VM = alloc(64 * 32 * 8 * 256)
OO = alloc(32 * 128 * 4096)
HH = alloc(2048 * 640 * 2)
HN = alloc(32 * 20 * 4096)
ACT = alloc(32 * 54 * 4096)
WS_USED = off
WS_BYTES = 268435456
assert WS_USED < WS_BYTES

LOG2E = 0x3fb8aa3b
SCALE = 0x3db504f3

class Asm:
    def __init__(self):
        self.lines = []
        self.lab = 0
    def __call__(self, s):
        self.lines.append("    " + s)
    def label(self, name):
        self.lines.append(name + ":")
    def newlabel(self, p="L"):
        self.lab += 1
        return "%s_%d" % (p, self.lab)
    def nop(self, n):
        while n > 0:
            k = min(n, 16)
            self("s_nop %d" % (k - 1))
            n -= k
    def raw(self, s):
        self.lines.append(s)

A = Asm()
kernels = []

def vr(b, n=1):
    return "v%d" % b if n == 1 else "v[%d:%d]" % (b, b + n - 1)
def ar(b, n=1):
    return "a%d" % b if n == 1 else "a[%d:%d]" % (b, b + n - 1)
def sr(b, n=1):
    return "s%d" % b if n == 1 else "s[%d:%d]" % (b, b + n - 1)

def kernel_begin(label):
    A.raw(".globl %s" % label)
    A.raw(".p2align 8")
    A.raw(".type %s,@function" % label)
    A.label(label)

def kernel_end(label, vgpr, sgpr=100, agpr=0):
    A("s_endpgm")
    kernels.append((label, vgpr, sgpr, agpr))

def srd(d, base, nbytes):
    A("s_mov_b32 s%d, s%d" % (d, base))
    A("s_and_b32 s%d, s%d, 0xffff" % (d + 1, base + 1))
    A("s_mov_b32 s%d, 0x%x" % (d + 2, nbytes))
    A("s_mov_b32 s%d, 0x00020000" % (d + 3))

def sdiv(dst, src, d, tmp):
    magic = (2 ** 32 + d - 1) // d
    A("s_mov_b32 s%d, 0x%x" % (tmp, magic))
    A("s_mul_hi_u32 s%d, s%d, s%d" % (dst, src, tmp))

def load_ptrs():
    A("s_load_dwordx16 s[16:31], s[0:1], 0")
    A("s_load_dwordx8 s[32:39], s[0:1], 64")
    A("s_load_dwordx4 s[40:43], s[0:1], 96")
def P(i):
    return 16 + 2 * i
PX, PMEM0, PWQ, PWK, PWV, PWO, PSEG, PBX, PWG, PWU, PWD, POUT, PDBG, PWS = [P(i) for i in range(14)]

def emit_layernorm():
    A("v_and_b32 v1, 15, v0")
    A("v_lshrrev_b32 v2, 4, v0")
    A("v_mul_u32_u24 v3, 1280, v1")
    A("v_lshl_add_u32 v3, v2, 3, v3")
    R = 16
    for kk in range(20):
        for hh in range(2):
            A("buffer_load_dwordx2 %s, v3, s[8:11], s12 offen offset:%d" % (vr(R + kk * 4 + hh * 2, 2), kk * 64 + hh * 32))
    A("v_mov_b32 v4, 0")
    A("v_mov_b32 v5, 0")
    A("s_waitcnt vmcnt(0)")
    for i in range(80):
        A("v_lshlrev_b32 v6, 16, v%d" % (R + i))
        A("v_and_b32 v7, 0xffff0000, v%d" % (R + i))
        A("v_add_f32 v4, v4, v6")
        A("v_add_f32 v5, v5, v7")
    A("v_add_f32 v4, v4, v5")
    xor_reduce(4, 5, "v_add_f32")
    A("v_mul_f32 v4, 0x3acccccd, v4")
    A("v_mov_b32 v8, 0")
    A("v_mov_b32 v9, 0")
    for i in range(80):
        A("v_lshlrev_b32 v6, 16, v%d" % (R + i))
        A("v_and_b32 v7, 0xffff0000, v%d" % (R + i))
        A("v_sub_f32 v6, v6, v4")
        A("v_sub_f32 v7, v7, v4")
        A("v_fmac_f32 v8, v6, v6")
        A("v_fmac_f32 v9, v7, v7")
    A("v_add_f32 v8, v8, v9")
    xor_reduce(8, 9, "v_add_f32")
    A("v_mul_f32 v8, 0x3acccccd, v8")
    A("v_cvt_pk_bf16_f32 v4, v4, v8")
    A("v_and_b32 v8, 0xffff0000, v4")
    A("v_lshlrev_b32 v4, 16, v4")
    A("v_add_f32 v8, 0x3727c5ac, v8")
    A("v_cvt_pk_bf16_f32 v8, v8, v8")
    A("v_lshlrev_b32 v8, 16, v8")
    A("v_sqrt_f32 v8, v8")
    A.nop(1)
    A("v_cvt_pk_bf16_f32 v8, v8, v8")
    A("v_lshlrev_b32 v8, 16, v8")
    A("v_rcp_f32 v8, v8")
    A.nop(1)
    for i in range(80):
        A("v_lshlrev_b32 v6, 16, v%d" % (R + i))
        A("v_and_b32 v7, 0xffff0000, v%d" % (R + i))
        A("v_sub_f32 v6, v6, v4")
        A("v_sub_f32 v7, v7, v4")
        A("v_cvt_pk_bf16_f32 v6, v6, v7")
        A("v_and_b32 v7, 0xffff0000, v6")
        A("v_lshlrev_b32 v6, 16, v6")
        A("v_mul_f32 v6, v6, v8")
        A("v_mul_f32 v7, v7, v8")
        A("v_cvt_pk_bf16_f32 v%d, v6, v7" % (R + i))
    A("v_lshlrev_b32 v3, 4, v0")
    for kk in range(20):
        if kk:
            A("s_add_u32 s13, s13, 4096")
        A("buffer_store_dwordx4 %s, v3, s[4:7], s13 offen" % vr(R + kk * 4, 4))

def xor_reduce(v, tmp, op):
    A("v_mov_b32 v%d, v%d" % (tmp, v))
    A.nop(2)
    A("v_permlane16_swap_b32 v%d, v%d" % (v, tmp))
    A.nop(1)
    A("%s v%d, v%d, v%d" % (op, v, v, tmp))
    A("v_mov_b32 v%d, v%d" % (tmp, v))
    A.nop(2)
    A("v_permlane32_swap_b32 v%d, v%d" % (v, tmp))
    A.nop(1)
    A("%s v%d, v%d, v%d" % (op, v, v, tmp))

def wave_id(sdst):
    A("v_lshrrev_b32 v1, 6, v0")
    A.nop(1)
    A("v_readfirstlane_b32 s%d, v1" % sdst)
    A("v_and_b32 v0, 63, v0")

T_QKV = 3840
T_WO = T_QKV + 1280
T_WG = T_WO + 540
T_WU = T_WG + 540
T_WD = T_WU + 540
T_LN = T_WD + 128
T_M0 = T_LN + 1
T_FILL = T_M0 + 296
K0_WGS = (T_FILL + 3) // 4

def gen_prep():
    lab = "prep_kernel"
    kernel_begin(lab)
    load_ptrs()
    wave_id(3)
    A("s_lshl_b32 s14, s2, 2")
    A("s_add_u32 s14, s14, s3")
    A("s_waitcnt lgkmcnt(0)")
    srd(4, PWS, WS_BYTES)
    Lend = "prep_end"
    A("s_cmp_ge_u32 s14, %d" % T_FILL)
    A("s_cbranch_scc1 %s" % Lend)
    A("s_cmp_ge_u32 s14, %d" % T_M0)
    A("s_cbranch_scc1 prep_fill")
    A("s_cmp_ge_u32 s14, %d" % T_LN)
    A("s_cbranch_scc1 prep_m0")
    A("s_cmp_ge_u32 s14, %d" % T_WD)
    A("s_cbranch_scc1 prep_ln")
    def relayout_setup(lo, ptr, N, K, ngroups, KK, dstbase, gofs):
        A("s_sub_u32 s44, s14, %d" % lo)
        sdiv(45, 44, ngroups, 46)
        A("s_mul_i32 s46, s45, %d" % ngroups)
        A("s_sub_u32 s46, s44, s46")
        srd(8, ptr, K * N * 2)
        A("s_mul_i32 s12, s45, %d" % (32 * N * 2))
        A("s_lshl_b32 s47, s46, 7")
        A("s_add_u32 s12, s12, s47")
        A("s_mov_b32 s15, %d" % (N * 2))
        A("s_add_u32 s46, s46, %d" % gofs)
        A("s_mul_i32 s13, s46, %d" % KK)
        A("s_add_u32 s13, s13, s45")
        A("s_lshl_b32 s13, s13, 12")
        A("s_add_u32 s13, s13, %d" % dstbase)
        A("s_branch prep_relayout")
    specs = [
        (0, 1280, PWQ, 4096, 640, 64, 20, WQKV, 0),
        (1280, 2560, PWK, 4096, 640, 64, 20, WQKV, 64),
        (2560, 3840, PWV, 4096, 640, 64, 20, WQKV, 128),
        (T_QKV, T_WO, PWO, 640, 4096, 10, 128, WO, 0),
        (T_WO, T_WG, PWG, 1728, 640, 27, 20, WGU, 0),
        (T_WG, T_WU, PWU, 1728, 640, 27, 20, WGU, 27),
        (T_WU, T_WD, PWD, 640, 1728, 10, 54, WD, 0),
    ]
    for i, (lo, hi, ptr, N, K, ng, KK, dst, gofs) in enumerate(specs):
        if i < len(specs) - 1:
            nxt = "prep_sp%d" % (i + 1)
            A("s_cmp_ge_u32 s14, %d" % hi)
            A("s_cbranch_scc1 %s" % nxt)
        relayout_setup(lo, ptr, N, K, ng, KK, dst, gofs)
        if i < len(specs) - 1:
            A.label(nxt)
    A.label("prep_relayout")
    A("v_lshrrev_b32 v1, 3, v0")
    A("v_and_b32 v2, 7, v0")
    A("v_mul_lo_u32 v3, v1, s15")
    A("v_lshl_add_u32 v3, v2, 4, v3")
    A("s_lshl_b32 s44, s15, 3")
    for i in range(4):
        A("buffer_load_dwordx4 %s, v3, s[8:11], s12 offen" % vr(16 + 4 * i, 4))
        if i < 3:
            A("s_add_u32 s12, s12, s44")
    A("s_mul_i32 s45, s3, 4608")
    A("v_mul_u32_u24 v4, 144, v1")
    A("v_lshl_add_u32 v4, v2, 4, v4")
    A("v_add_u32 v4, s45, v4")
    A("v_lshrrev_b32 v5, 4, v0")
    A("v_bfe_u32 v6, v0, 2, 2")
    A("v_lshl_add_u32 v5, v5, 2, v6")
    A("v_mul_u32_u24 v5, 144, v5")
    A("v_and_b32 v6, 3, v0")
    A("v_lshl_add_u32 v5, v6, 3, v5")
    A("v_add_u32 v5, s45, v5")
    A("v_lshlrev_b32 v7, 4, v0")
    for i in range(4):
        A("s_waitcnt vmcnt(%d)" % (3 - i))
        A("ds_write_b128 v4, %s offset:%d" % (vr(16 + 4 * i, 4), i * 8 * 144))
    A("s_waitcnt lgkmcnt(0)")
    for t in range(4):
        for hh in range(2):
            A("ds_read_b64_tr_b16 %s, v5 offset:%d" % (vr(32 + 4 * t + 2 * hh, 2), hh * 16 * 144 + t * 32))
    A("s_waitcnt lgkmcnt(0)")
    for t in range(4):
        A("buffer_store_dwordx4 %s, v7, s[4:7], s13 offen offset:%d" % (vr(32 + 4 * t, 4), t * 1024))
    A("s_branch %s" % Lend)

    A.label("prep_ln")
    A("s_sub_u32 s44, s14, %d" % T_WD)
    srd(8, PX, 2048 * 1280)
    A("s_mul_i32 s12, s44, %d" % (16 * 1280))
    A("s_lshr_b32 s45, s44, 2")
    A("s_and_b32 s46, s44, 3")
    A("s_mul_i32 s13, s45, %d" % (20 * 4096))
    A("s_lshl_b32 s46, s46, 10")
    A("s_add_u32 s13, s13, s46")
    A("s_add_u32 s13, s13, %d" % XN)
    emit_layernorm()
    A("s_branch %s" % Lend)

    A.label("prep_m0")
    srd(8, PMEM0, 8 * 1280)
    A("v_and_b32 v1, 7, v0")
    A("v_bfe_u32 v2, v0, 3, 2")
    A("v_mul_u32_u24 v3, 1280, v1")
    A("v_lshl_add_u32 v3, v2, 3, v3")
    A("v_lshlrev_b32 v4, 4, v0")
    A("v_cmp_gt_u32 vcc, 32, v0")
    A("s_and_saveexec_b64 s[44:45], vcc")
    for kk in range(20):
        for hh in range(2):
            A("buffer_load_dwordx2 %s, v3, s[8:11], 0 offen offset:%d" % (vr(16 + kk * 4 + hh * 2, 2), kk * 64 + hh * 32))
    A("s_mov_b32 s13, %d" % MEM)
    A("s_waitcnt vmcnt(0)")
    for kk in range(20):
        A("buffer_store_dwordx4 %s, v4, s[4:7], s13 offen offset:%d" % (vr(16 + kk * 4, 4), (kk % 8) * 512))
        if kk % 8 == 7:
            A("s_add_u32 s13, s13, 4096")
    A("s_branch %s" % Lend)

    A.label("prep_fill")
    A("s_sub_u32 s44, s14, %d" % T_M0)
    A("s_lshl_b32 s13, s44, 14")
    A("s_add_u32 s13, s13, %d" % (MEM + 10240))
    A("v_lshlrev_b32 v4, 4, v0")
    for i in range(4):
        A("v_mov_b32 v%d, -1" % (16 + i))
    for i in range(16):
        A("buffer_store_dwordx4 v[16:19], v4, s[4:7], s13 offen offset:%d" % ((i % 4) * 1024))
        if i % 4 == 3:
            A("s_add_u32 s13, s13, 4096")
    A.label(Lend)
    kernel_end(lab, 128)

def gemm_mainloop(KK, PT, QT, ptile_offs, qtile_offs, swap, ACC, F0, F1):
    STG = (PT + QT) * 1024
    NG = (PT + QT) // 4
    np_, nq = len(ptile_offs), len(qtile_offs)
    nf = np_ + nq
    Lskip = A.newlabel("gskip")
    def issue(slot):
        if NG < 4:
            lab = A.newlabel("gnoload")
            A("s_cmp_ge_u32 s3, %d" % NG)
            A("s_cbranch_scc1 %s" % lab)
        A("s_add_u32 m0, s49, %d" % (slot * STG))
        A.nop(1)
        for i in range(4):
            A("buffer_load_dwordx4 v1, s[4:7], s48 offen offset:%d lds" % (i * 1024))
        A("s_add_u32 s48, s48, 4096")
        if NG < 4:
            A.label(lab)
    def reads(slot, F):
        for i, o in enumerate(ptile_offs):
            A("ds_read_b128 %s, v2 offset:%d" % (vr(F + 4 * i, 4), slot * STG + o))
        for j, o in enumerate(qtile_offs):
            A("ds_read_b128 %s, v3 offset:%d" % (vr(F + 4 * np_ + 4 * j, 4), slot * STG + o))
    def mfmas(F, first):
        for i in range(np_):
            for j in range(nq):
                a = vr(ACC + (i * nq + j) * 4, 4)
                pf = vr(F + 4 * i, 4)
                qf = vr(F + 4 * np_ + 4 * j, 4)
                x, y = (qf, pf) if swap else (pf, qf)
                A("v_mfma_f32_16x16x32_bf16 %s, %s, %s, %s" % (a, x, y, a))
    A("s_lshl_b32 s49, s3, 12")
    A("v_lshlrev_b32 v1, 4, v0")
    for i in range(np_ * nq * 4):
        A("v_mov_b32 v%d, 0" % (ACC + i))
    for st in range(min(3, KK)):
        issue(st)
    A("s_waitcnt vmcnt(%d)" % (4 * (min(3, KK) - 1)))
    A("s_barrier")
    reads(0, F0)
    def step(kk, lastknown):
        Fc = F0 if kk % 2 == 0 else F1
        Fn = F1 if kk % 2 == 0 else F0
        if kk + 1 < KK:
            ahead = min(kk + 2, KK - 1) - (kk + 1)
            A("s_waitcnt vmcnt(%d)" % (4 * ahead))
            A("s_barrier")
            if kk + 3 < KK:
                issue((kk + 3) % 4)
            A("s_waitcnt lgkmcnt(0)")
            reads((kk + 1) % 4, Fn)
        else:
            A("s_waitcnt lgkmcnt(0)")
        mfmas(Fc, False)
    nloop = max(0, (KK - 3) // 4)
    if nloop > 0:
        Ll = A.newlabel("gloop")
        A("s_mov_b32 s50, %d" % nloop)
        A.label(Ll)
        for u in range(4):
            step(u, False)
        A("s_sub_u32 s50, s50, 1")
        A("s_cmp_lg_u32 s50, 0")
        A("s_cbranch_scc1 %s" % Ll)
    for kk in range(nloop * 4, KK):
        step(kk, True)
    A.nop(8)

def pack4(dst, a, b):
    A("v_cvt_pk_bf16_f32 v%d, v%d, v%d" % (dst, a, a + 1))
    A("v_cvt_pk_bf16_f32 v%d, v%d, v%d" % (dst + 1, a + 2, a + 3))
    A("v_cvt_pk_bf16_f32 v%d, v%d, v%d" % (dst + 2, b, b + 1))
    A("v_cvt_pk_bf16_f32 v%d, v%d, v%d" % (dst + 3, b + 2, b + 3))

def gen_qkv():
    lab = "qkv_kernel"
    kernel_begin(lab)
    A("s_cmp_ge_u32 s2, 1536")
    A("s_cbranch_scc1 qkv_end")
    load_ptrs()
    wave_id(3)
    sdiv(45, 2, 96, 46)
    A("s_mul_i32 s46, s45, 96")
    A("s_sub_u32 s44, s2, s46")
    A("s_waitcnt lgkmcnt(0)")
    srd(4, PWS, WS_BYTES)
    A("s_lshl_b32 s46, s44, 1")
    A("s_add_u32 s46, s46, s3")
    A("s_mul_i32 s46, s46, %d" % (20 * 4096))
    A("s_add_u32 s46, s46, %d" % WQKV)
    A("s_lshl_b32 s47, s45, 1")
    A("s_add_u32 s47, s47, s3")
    A("s_sub_u32 s47, s47, 2")
    A("s_mul_i32 s47, s47, %d" % (20 * 4096))
    A("s_add_u32 s47, s47, %d" % XN)
    A("s_cmp_lt_u32 s3, 2")
    A("s_cselect_b32 s48, s46, s47")
    A("s_and_b32 s51, s3, 1")
    A("s_lshr_b32 s52, s3, 1")
    A("s_lshl_b32 s53, s51, 12")
    A("s_lshl_b32 s54, s52, 12")
    A("s_add_u32 s54, s54, 8192")
    A("v_lshlrev_b32 v2, 4, v0")
    A("v_add_u32 v3, s54, v2")
    A("v_add_u32 v2, s53, v2")
    ACC, F0, F1 = 8, 72, 104
    offs = [0, 1024, 2048, 3072]
    A("s_cmp_ge_u32 s44, 64")
    A("s_cbranch_scc1 qkv_v")
    gemm_mainloop(20, 8, 8, offs, offs, False, ACC, F0, F1)
    A("s_and_b32 s55, s44, 31")
    A("s_cmp_lt_u32 s44, 32")
    A("s_mov_b32 s56, %d" % QX)
    A("s_cselect_b32 s56, s56, %d" % KX)
    A("s_lshl_b32 s57, s45, 2")
    A("s_lshl_b32 s58, s52, 1")
    A("s_add_u32 s57, s57, s58")
    A("s_lshl_b32 s57, s57, 5")
    A("s_add_u32 s57, s57, s55")
    A("s_lshl_b32 s57, s57, 13")
    A("s_lshl_b32 s58, s51, 11")
    A("s_add_u32 s57, s57, s58")
    A("s_add_u32 s57, s57, s56")
    A("v_lshlrev_b32 v1, 4, v0")
    for j in range(4):
        for ii in range(2):
            d = F0 + ((j * 2 + ii) % 4) * 4
            pack4(d, ACC + ((2 * ii) * 4 + j) * 4, ACC + ((2 * ii + 1) * 4 + j) * 4)
            o = (j & 1) * 4096 + ii * 1024
            if j == 2 and ii == 0:
                A("s_add_u32 s57, s57, %d" % (32 * 8192))
            if o >= 4096:
                A("s_add_u32 s58, s57, 4096")
                A("buffer_store_dwordx4 %s, v1, s[4:7], s58 offen offset:%d" % (vr(d, 4), o - 4096))
            else:
                A("buffer_store_dwordx4 %s, v1, s[4:7], s57 offen offset:%d" % (vr(d, 4), o))
    A("s_branch qkv_end")
    A.label("qkv_v")
    gemm_mainloop(20, 8, 8, offs, offs, True, ACC, F0, F1)
    A("s_and_b32 s55, s44, 31")
    A("s_lshl_b32 s57, s45, 2")
    A("s_lshl_b32 s58, s52, 1")
    A("s_add_u32 s57, s57, s58")
    A("s_lshl_b32 s57, s57, 5")
    A("s_add_u32 s57, s57, s55")
    A("s_lshl_b32 s57, s57, 13")
    A("s_lshl_b32 s58, s51, 12")
    A("s_add_u32 s57, s57, s58")
    A("s_add_u32 s57, s57, %d" % VX)
    A("v_lshlrev_b32 v1, 4, v0")
    for jj in range(2):
        if jj:
            A("s_add_u32 s57, s57, %d" % (32 * 8192))
        for i in range(4):
            d = F0 + i * 4 + jj * 16
            pack4(d, ACC + (i * 4 + 2 * jj) * 4, ACC + (i * 4 + 2 * jj + 1) * 4)
            A("buffer_store_dwordx4 %s, v1, s[4:7], s57 offen offset:%d" % (vr(d, 4), i * 1024))
    A.label("qkv_end")
    kernel_end(lab, 136)

def emit_scale(S, n=12):
    for i in range(0, n, 2):
        A("v_cvt_pk_bf16_f32 v%d, v%d, v%d" % (S + i, S + i, S + i + 1))
        A("v_and_b32 v%d, 0xffff0000, v%d" % (S + i + 1, S + i))
        A("v_lshlrev_b32 v%d, 16, v%d" % (S + i, S + i))
        A("v_mul_f32 v%d, 0x%x, v%d" % (S + i, SCALE, S + i))
        A("v_mul_f32 v%d, 0x%x, v%d" % (S + i + 1, SCALE, S + i + 1))
        A("v_cvt_pk_bf16_f32 v%d, v%d, v%d" % (S + i, S + i, S + i + 1))
        A("v_and_b32 v%d, 0xffff0000, v%d" % (S + i + 1, S + i))
        A("v_lshlrev_b32 v%d, 16, v%d" % (S + i, S + i))

def emit_softmax(S, pm, px, t0):
    m, t = t0, t0 + 1
    A("v_max3_f32 v%d, v%d, v%d, v%d" % (m, S, S + 1, S + 2))
    for i in range(3, 11, 2):
        A("v_max3_f32 v%d, v%d, v%d, v%d" % (m, m, S + i, S + i + 1))
    A("v_max_f32 v%d, v%d, v%d" % (m, m, S + 11))
    xor_reduce(m, t, "v_max_f32")
    for i in range(12):
        A("v_sub_f32 v%d, v%d, v%d" % (S + i, S + i, m))
    for i in range(12):
        A("v_mul_f32 v%d, 0x%x, v%d" % (S + i, LOG2E, S + i))
    for i in range(12):
        A("v_exp_f32 v%d, v%d" % (S + i, S + i))
    A.nop(1)
    A("v_add_f32 v%d, v%d, v%d" % (m, S, S + 1))
    for i in range(2, 12):
        A("v_add_f32 v%d, v%d, v%d" % (m, m, S + i))
    xor_reduce(m, t, "v_add_f32")
    A("v_rcp_f32 v%d, v%d" % (m, m))
    A.nop(1)
    for i in range(12):
        A("v_mul_f32 v%d, v%d, v%d" % (S + i, S + i, m))
    A("v_cvt_pk_bf16_f32 v%d, v%d, v%d" % (pm, S, S + 1))
    A("v_cvt_pk_bf16_f32 v%d, v%d, v%d" % (pm + 1, S + 2, S + 3))
    pack4(px, S + 4, S + 8)

def gen_chain():
    lab = "chain_kernel"
    kernel_begin(lab)
    A("s_cmp_ge_u32 s2, 72")
    A("s_cbranch_scc1 chain_end")
    load_ptrs()
    wave_id(3)
    A("s_waitcnt lgkmcnt(0)")
    srd(4, PWS, WS_BYTES)
    A("v_lshlrev_b32 v1, 4, v0")
    A("v_lshrrev_b32 v3, 4, v0")
    A("v_and_b32 v4, 7, v0")
    A("v_lshlrev_b32 v2, 7, v3")
    A("v_lshl_add_u32 v2, v4, 4, v2")
    A("v_and_b32 v4, 15, v0")
    A("v_cmp_gt_u32 s[60:61], 8, v4")
    A("v_cmp_gt_u32 s[62:63], 32, v0")
    A("s_cmp_ge_u32 s2, 32")
    A("s_cbranch_scc1 chain_wo")
    WV = 176
    MEMF = 8
    ACCQ, ACCK, ACCV = 88, 96, 104
    KXF, VXF = 112, 120
    LW = 128
    QF, KF = 144, 148
    ST = 152
    PMr, PXr = 164, 166
    TMP = 170
    def place(idx):
        if idx < 64:
            return ("a", idx * 4)
        if idx < 84:
            return ("v", WV + (idx - 64) * 4)
        return ("l", (idx - 84))
    A("s_lshl_b32 s44, s2, 1")
    A("s_lshr_b32 s45, s3, 1")
    A("s_add_u32 s44, s44, s45")
    A("s_mul_i32 s44, s44, %d" % (20 * 4096))
    A("s_and_b32 s45, s3, 1")
    A("s_lshl_b32 s45, s45, 11")
    A("s_add_u32 s44, s44, s45")
    A("s_add_u32 s44, s44, %d" % WQKV)
    A("s_mul_i32 s46, s3, %d" % (36 * 1024))
    A("v_add_u32 v5, s46, v1")
    A("s_mul_i32 s47, s3, 3072")
    A("s_add_u32 s47, s47, 147456")
    A("v_add_u32 v6, s47, v1")
    A("v_add_u32 v7, 147456, v1")
    cnt = 0
    for mat in range(3):
        for t in range(2):
            for kk in range(20):
                idx = (mat * 2 + t) * 20 + kk
                kind, r = place(idx)
                so = mat * 64 * 20 * 4096 + kk * 4096
                A("s_add_u32 s45, s44, %d" % so)
                if kind == "a":
                    A("buffer_load_dwordx4 %s, v1, s[4:7], s45 offen offset:%d" % (ar(r, 4), t * 1024))
                elif kind == "v":
                    A("buffer_load_dwordx4 %s, v1, s[4:7], s45 offen offset:%d" % (vr(r, 4), t * 1024))
                else:
                    A("s_add_u32 m0, s46, %d" % (r * 1024))
                    A("s_add_u32 s45, s45, %d" % (t * 1024))
                    A.nop(1)
                    A("buffer_load_dwordx4 v1, s[4:7], s45 offen lds")
                cnt += 1
                if cnt % 32 == 0:
                    A("s_waitcnt vmcnt(16)")
    A("s_waitcnt vmcnt(0)")
    A("s_barrier")
    A("s_mov_b32 s50, 0")
    A("s_mov_b32 s51, %d" % MEM)
    A("s_lshl_b32 s52, s2, 13")
    A("s_lshl_b32 s56, s2, 2")
    A("s_add_u32 s56, s56, s3")
    A("s_lshl_b32 s53, s56, 9")
    A("s_add_u32 s54, s53, %d" % KM)
    A("s_add_u32 s55, s53, %d" % VM)
    A("s_add_u32 s53, s53, %d" % OM)
    A("s_lshl_b32 s57, s3, 10")
    A("s_lshl_b32 s58, s3, 11")
    A.label("chain_hstep")
    A("s_add_u32 s45, s52, s57")
    A("s_add_u32 s45, s45, %d" % KX)
    A("buffer_load_dwordx4 %s, v1, s[4:7], s45 offen" % vr(KXF, 4))
    A("s_add_u32 s45, s45, 4096")
    A("buffer_load_dwordx4 %s, v1, s[4:7], s45 offen" % vr(KXF + 4, 4))
    A("s_add_u32 s45, s52, s58")
    A("s_add_u32 s45, s45, %d" % VX)
    A("buffer_load_dwordx4 %s, v1, s[4:7], s45 offen" % vr(VXF, 4))
    A("buffer_load_dwordx4 %s, v1, s[4:7], s45 offen offset:1024" % vr(VXF + 4, 4))
    A("s_mov_b32 s66, 0")
    A.label("chain_hpoll")
    A("s_add_u32 s66, s66, 1")
    A("s_cmp_gt_u32 s66, 0x10000")
    A("s_cbranch_scc1 chain_end")
    A("s_add_u32 s45, s51, 4096")
    A("s_add_u32 s59, s51, 8192")
    for kk in range(20):
        sreg = "s51" if kk < 8 else ("s45" if kk < 16 else "s59")
        A("buffer_load_dwordx4 %s, v2, s[4:7], %s offen offset:%d sc1" % (vr(MEMF + 4 * kk, 4), sreg, (kk % 8) * 512))
    A("s_waitcnt vmcnt(0)")
    A("v_max3_u32 v%d, v%d, v%d, v%d" % (TMP, MEMF, MEMF + 1, MEMF + 2))
    for i in range(3, 79, 2):
        A("v_max3_u32 v%d, v%d, v%d, v%d" % (TMP, TMP, MEMF + i, MEMF + i + 1))
    A("v_max_u32 v%d, v%d, v%d" % (TMP, TMP, MEMF + 79))
    A("v_cmp_eq_u32 vcc, -1, v%d" % TMP)
    A("s_cbranch_vccnz chain_hpoll")
    def wop(idx):
        kind, r = place(idx)
        if kind == "a":
            return ar(r, 4)
        if kind == "v":
            return vr(r, 4)
        return None
    for mat in range(2):
        for kk in range(20):
            for t in range(2):
                idx = (mat * 2 + t) * 20 + kk
                acc = vr((ACCQ if mat == 0 else ACCK) + 4 * t, 4)
                A("v_mfma_f32_16x16x32_bf16 %s, %s, %s, %s" % (acc, wop(idx), vr(MEMF + 4 * kk, 4), "0" if kk == 0 else acc))
    vlist = [(t, kk) for kk in range(20) for t in range(2)]
    lds_seq = [(t, kk) for (t, kk) in vlist if place((4 + t) * 20 + kk)[0] == "l"]
    A.nop(8)
    pack4(QF, ACCQ, ACCQ + 4)
    pack4(KF, ACCK, ACCK + 4)
    A.nop(2)
    A("v_mfma_f32_16x16x32_bf16 %s, %s, %s, 0" % (vr(ST, 4), vr(KF, 4), vr(QF, 4)))
    A("v_mfma_f32_16x16x32_bf16 %s, %s, %s, 0" % (vr(ST + 4, 4), vr(KXF, 4), vr(QF, 4)))
    A("v_mfma_f32_16x16x32_bf16 %s, %s, %s, 0" % (vr(ST + 8, 4), vr(KXF + 4, 4), vr(QF, 4)))
    A.nop(8)
    for kt in range(3):
        A("ds_write_b128 v6, %s offset:%d" % (vr(ST + 4 * kt, 4), kt * 1024))
    A("s_mov_b64 exec, s[60:61]")
    A("buffer_store_dwordx4 %s, v2, s[4:7], s54 offen" % vr(KF, 4))
    A("s_mov_b64 exec, -1")
    A("s_waitcnt lgkmcnt(0)")
    A("s_barrier")
    li = 0
    pending = []
    grp = []
    for n, (t, kk) in enumerate(vlist):
        idx = (4 + t) * 20 + kk
        kind, r = place(idx)
        acc = vr(ACCV + 4 * t, 4)
        c = "0" if kk == 0 else acc
        if kind == "v":
            A("v_mfma_f32_16x16x32_bf16 %s, %s, %s, %s" % (acc, vr(MEMF + 4 * kk, 4), vr(r, 4), c))
        else:
            if li % 4 == 0:
                for q in range(4):
                    tt_, kk_ = lds_seq[li + q]
                    rr = place((4 + tt_) * 20 + kk_)[1]
                    A("ds_read_b128 %s, v5 offset:%d" % (vr(LW + 4 * q, 4), rr * 1024))
                A("s_waitcnt lgkmcnt(0)")
            A("v_mfma_f32_16x16x32_bf16 %s, %s, %s, %s" % (acc, vr(MEMF + 4 * kk, 4), vr(LW + 4 * (li % 4), 4), c))
            li += 1
    A.nop(4)
    for w in range(4):
        for kt in range(3):
            A("ds_read_b128 %s, v7 offset:%d" % (vr(MEMF + (w * 3 + kt) * 4, 4), w * 3072 + kt * 1024))
    A("s_waitcnt lgkmcnt(0)")
    for i in range(12):
        A("v_add_f32 v%d, v%d, v%d" % (ST + i, MEMF + i, MEMF + 12 + i))
        A("v_add_f32 v%d, v%d, v%d" % (MEMF + 24 + i, MEMF + 24 + i, MEMF + 36 + i))
    for i in range(12):
        A("v_add_f32 v%d, v%d, v%d" % (ST + i, ST + i, MEMF + 24 + i))
    emit_scale(ST)
    A("v_mov_b32 v%d, 0xff800000" % TMP)
    for r in range(4):
        A("v_cndmask_b32 v%d, v%d, v%d, s[62:63]" % (ST + r, TMP, ST + r))
    emit_softmax(ST, PMr, PXr, TMP)
    for t in range(2):
        A("v_cvt_pk_bf16_f32 v%d, v%d, v%d" % (ACCQ + 2 * t, ACCV + 4 * t, ACCV + 4 * t + 1))
        A("v_cvt_pk_bf16_f32 v%d, v%d, v%d" % (ACCQ + 2 * t + 1, ACCV + 4 * t + 2, ACCV + 4 * t + 3))
    A.nop(2)
    for t in range(2):
        A("v_mfma_f32_16x16x32_bf16 %s, %s, %s, 0" % (vr(ACCK + 4 * t, 4), vr(VXF + 4 * t, 4), vr(PXr, 4)))
    for t in range(2):
        A("v_mfma_f32_16x16x16_bf16 %s, %s, %s, %s" % (vr(ACCK + 4 * t, 4), vr(ACCQ + 2 * t, 2), vr(PMr, 2), vr(ACCK + 4 * t, 4)))
    A.nop(8)
    pack4(QF, ACCK, ACCK + 4)
    for i in range(4):
        A("v_min_u32 v%d, -2, v%d" % (QF + i, QF + i))
    A("s_mov_b64 exec, s[60:61]")
    A("buffer_store_dwordx4 %s, v2, s[4:7], s53 offen sc1" % vr(QF, 4))
    A("s_mov_b64 exec, s[62:63]")
    A("v_lshlrev_b32 v%d, 3, v0" % TMP)
    A("buffer_store_dwordx2 %s, v%d, s[4:7], s55 offen" % (vr(ACCQ, 2), TMP))
    A("buffer_store_dwordx2 %s, v%d, s[4:7], s55 offen offset:256" % (vr(ACCQ + 2, 2), TMP))
    A("s_mov_b64 exec, -1")
    A("s_add_u32 s50, s50, 1")
    A("s_add_u32 s51, s51, 10240")
    A("s_add_u32 s52, s52, %d" % (32 * 8192))
    A("s_add_u32 s53, s53, 65536")
    A("s_add_u32 s54, s54, 65536")
    A("s_add_u32 s55, s55, 65536")
    A("s_cmp_lt_u32 s50, 64")
    A("s_cbranch_scc1 chain_hstep")
    A("s_branch chain_end")

    A.label("chain_wo")
    A("s_sub_u32 s44, s2, 32")
    A("s_lshr_b32 s45, s44, 2")
    A("s_lshl_b32 s45, s45, 7")
    A("s_lshl_b32 s46, s3, 5")
    A("s_add_u32 s45, s45, s46")
    A("s_lshl_b32 s45, s45, 12")
    A("s_and_b32 s46, s44, 3")
    A("s_lshl_b32 s46, s46, 10")
    A("s_add_u32 s45, s45, s46")
    A("s_add_u32 s45, s45, %d" % WO)
    for kk in range(32):
        A("buffer_load_dwordx4 %s, v1, s[4:7], s45 offen" % ar(4 * kk, 4))
        A("s_add_u32 s45, s45, 4096")
    OF = 8
    ACC = 136
    T2 = 140
    A("s_lshl_b32 s47, s3, 10")
    A("v_add_u32 v6, s47, v1")
    A("s_lshl_b32 s51, s3, 14")
    A("s_add_u32 s51, s51, %d" % OM)
    A("s_lshr_b32 s53, s44, 1")
    A("s_lshl_b32 s53, s53, 9")
    A("s_and_b32 s46, s44, 1")
    A("s_lshl_b32 s46, s46, 3")
    A("s_add_u32 s53, s53, s46")
    A("s_add_u32 s53, s53, %d" % (MEM + 10240))
    A("s_mov_b32 s50, 0")
    A("s_waitcnt vmcnt(0)")
    A("s_mov_b32 s66, 0")
    A.label("chain_wstep")
    A("s_add_u32 s66, s66, 1")
    A("s_cmp_gt_u32 s66, 0x400000")
    A("s_cbranch_scc1 chain_end")
    A("s_add_u32 s54, s51, 4096")
    A("s_add_u32 s55, s51, 8192")
    A("s_add_u32 s56, s51, 12288")
    for kk in range(32):
        sreg = ["s51", "s54", "s55", "s56"][kk // 8]
        A("buffer_load_dwordx4 %s, v2, s[4:7], %s offen offset:%d sc1" % (vr(OF + 4 * kk, 4), sreg, (kk % 8) * 512))
    A("s_waitcnt vmcnt(0)")
    A("v_max3_u32 v%d, v%d, v%d, v%d" % (T2, OF, OF + 1, OF + 2))
    for i in range(3, 127, 2):
        A("v_max3_u32 v%d, v%d, v%d, v%d" % (T2, T2, OF + i, OF + i + 1))
    A("v_max_u32 v%d, v%d, v%d" % (T2, T2, OF + 127))
    A("v_cmp_eq_u32 vcc, -1, v%d" % T2)
    A("s_cbranch_vccnz chain_wstep")
    for kk in range(32):
        A("v_mfma_f32_16x16x32_bf16 %s, %s, %s, %s" % (vr(ACC, 4), ar(4 * kk, 4), vr(OF + 4 * kk, 4), "0" if kk == 0 else vr(ACC, 4)))
    A.nop(8)
    A("ds_write_b128 v6, %s" % vr(ACC, 4))
    A("s_waitcnt lgkmcnt(0)")
    A("s_barrier")
    A("s_cmp_lg_u32 s3, 0")
    A("s_cbranch_scc1 chain_wnext")
    for w in range(1, 4):
        A("ds_read_b128 %s, v1 offset:%d" % (vr(OF + 4 * w, 4), w * 1024))
    A("s_waitcnt lgkmcnt(0)")
    for i in range(4):
        A("v_add_f32 v%d, v%d, v%d" % (ACC + i, ACC + i, OF + 4 + i))
        A("v_add_f32 v%d, v%d, v%d" % (OF + 8 + i, OF + 8 + i, OF + 12 + i))
    for i in range(4):
        A("v_add_f32 v%d, v%d, v%d" % (ACC + i, ACC + i, OF + 8 + i))
    A("v_cvt_pk_bf16_f32 v%d, v%d, v%d" % (T2, ACC, ACC + 1))
    A("v_cvt_pk_bf16_f32 v%d, v%d, v%d" % (T2 + 1, ACC + 2, ACC + 3))
    A("v_min_u32 v%d, -2, v%d" % (T2, T2))
    A("v_min_u32 v%d, -2, v%d" % (T2 + 1, T2 + 1))
    A("s_mov_b64 exec, s[60:61]")
    A("buffer_store_dwordx2 %s, v2, s[4:7], s53 offen sc1" % vr(T2, 2))
    A("s_mov_b64 exec, -1")
    A.label("chain_wnext")
    A("s_add_u32 s50, s50, 1")
    A("s_add_u32 s51, s51, 65536")
    A("s_add_u32 s53, s53, 10240")
    A("s_cmp_lt_u32 s50, 63")
    A("s_cbranch_scc1 chain_wstep")
    A.label("chain_end")
    kernel_end(lab, 256, 100, 256)

def gen_xattn():
    lab = "xattn_kernel"
    kernel_begin(lab)
    A("s_cmp_ge_u32 s2, 512")
    A("s_cbranch_scc1 xattn_end")
    load_ptrs()
    wave_id(3)
    A("s_lshl_b32 s44, s2, 2")
    A("s_add_u32 s44, s44, s3")
    A("s_waitcnt lgkmcnt(0)")
    srd(4, PWS, WS_BYTES)
    A("v_lshlrev_b32 v1, 4, v0")
    A("v_lshrrev_b32 v3, 4, v0")
    A("v_and_b32 v4, 7, v0")
    A("v_lshlrev_b32 v2, 7, v3")
    A("v_lshl_add_u32 v2, v4, 4, v2")
    A("v_and_b32 v5, 31, v0")
    A("v_lshlrev_b32 v5, 3, v5")
    A("v_cmp_gt_u32 s[62:63], 32, v0")
    A("v_and_b32 v4, 15, v0")
    A("v_lshlrev_b32 v6, 2, v3")
    for r in range(4):
        A("v_add_u32 v7, %d, v6" % r)
        A("v_cmp_le_u32 s[%d:%d], v7, v4" % (64 + 2 * r, 65 + 2 * r))
    QF, KXF, KMF, VXF, VMF = 8, 40, 72, 88, 120
    ST = 136
    PM_, PX_ = 160, 164
    TMP = 172
    OA = 176
    A("s_lshl_b32 s45, s44, 13")
    A("s_add_u32 s46, s45, %d" % QX)
    A("s_add_u32 s47, s46, 4096")
    for i in range(8):
        A("buffer_load_dwordx4 %s, v1, s[4:7], %s offen offset:%d" % (vr(QF + 4 * i, 4), "s46" if i < 4 else "s47", (i % 4) * 1024))
    A("s_add_u32 s46, s45, %d" % KX)
    A("s_add_u32 s47, s46, 4096")
    for i in range(8):
        A("buffer_load_dwordx4 %s, v1, s[4:7], %s offen offset:%d" % (vr(KXF + 4 * i, 4), "s46" if i < 4 else "s47", (i % 4) * 1024))
    A("s_lshl_b32 s48, s44, 11")
    A("s_add_u32 s46, s48, %d" % KM)
    for i in range(4):
        A("buffer_load_dwordx4 %s, v2, s[4:7], s46 offen offset:%d" % (vr(KMF + 4 * i, 4), i * 512))
    A("s_add_u32 s46, s45, %d" % VX)
    A("s_add_u32 s47, s46, 4096")
    for i in range(8):
        A("buffer_load_dwordx4 %s, v1, s[4:7], %s offen offset:%d" % (vr(VXF + 4 * i, 4), "s46" if i < 4 else "s47", (i % 4) * 1024))
    A("s_add_u32 s46, s48, %d" % VM)
    for i in range(8):
        A("buffer_load_dwordx2 %s, v5, s[4:7], s46 offen offset:%d" % (vr(VMF + 2 * i, 2), i * 256))
    A("s_waitcnt vmcnt(16)")
    for tt in range(2):
        for kt in range(3):
            if tt == 0 and kt == 2:
                continue
            for w in range(4):
                kf = KMF + 4 * w if kt == 0 else KXF + ((kt - 1) * 4 + w) * 4
                acc = vr(ST + tt * 12 + kt * 4, 4)
                A("v_mfma_f32_16x16x32_bf16 %s, %s, %s, %s" % (acc, vr(kf, 4), vr(QF + (tt * 4 + w) * 4, 4), "0" if w == 0 else acc))
    A.nop(8)
    A("v_mov_b32 v%d, 0xff800000" % (TMP + 2))
    for tt in range(2):
        S = ST + tt * 12
        if tt == 0:
            emit_scale(S, 8)
            for r in range(4):
                A("v_mov_b32 v%d, 0xff800000" % (S + 8 + r))
        else:
            emit_scale(S, 12)
        for r in range(4):
            A("v_cndmask_b32 v%d, v%d, v%d, s[62:63]" % (S + r, TMP + 2, S + r))
        d = S + 4 + 4 * tt
        for r in range(4):
            A("v_cndmask_b32 v%d, v%d, v%d, s[%d:%d]" % (d + r, TMP + 2, d + r, 64 + 2 * r, 65 + 2 * r))
        emit_softmax(S, PM_ + 2 * tt, PX_ + 4 * tt, TMP)
    A("s_waitcnt vmcnt(0)")
    A.nop(2)
    for tt in range(2):
        for et in range(8):
            acc = vr(OA + (tt * 8 + et) * 4, 4)
            A("v_mfma_f32_16x16x32_bf16 %s, %s, %s, 0" % (acc, vr(VXF + 4 * et, 4), vr(PX_ + 4 * tt, 4)))
        for et in range(8):
            acc = vr(OA + (tt * 8 + et) * 4, 4)
            A("v_mfma_f32_16x16x16_bf16 %s, %s, %s, %s" % (acc, vr(VMF + 2 * et, 2), vr(PM_ + 2 * tt, 2), acc))
    A.nop(8)
    A("s_lshr_b32 s45, s44, 6")
    A("s_lshl_b32 s45, s45, 7")
    A("s_and_b32 s46, s44, 31")
    A("s_lshl_b32 s46, s46, 2")
    A("s_add_u32 s45, s45, s46")
    A("s_lshl_b32 s45, s45, 12")
    A("s_bfe_u32 s46, s44, 0x10005")
    A("s_lshl_b32 s46, s46, 11")
    A("s_add_u32 s45, s45, s46")
    A("s_add_u32 s45, s45, %d" % OO)
    for w in range(4):
        for tt in range(2):
            d = QF + (w * 2 + tt) * 4
            pack4(d, OA + (tt * 8 + 2 * w) * 4, OA + (tt * 8 + 2 * w + 1) * 4)
            A("buffer_store_dwordx4 %s, v1, s[4:7], s45 offen offset:%d" % (vr(d, 4), tt * 1024))
        A("s_add_u32 s45, s45, 4096")
    A.label("xattn_end")
    kernel_end(lab, 240)

def gen_proj(lab, KK, WB, XB, res_from_x):
    kernel_begin(lab)
    A("s_cmp_ge_u32 s2, 160")
    A("s_cbranch_scc1 %s_end" % lab)
    load_ptrs()
    wave_id(3)
    sdiv(45, 2, 5, 46)
    A("s_mul_i32 s46, s45, 5")
    A("s_sub_u32 s44, s2, s46")
    A("s_waitcnt lgkmcnt(0)")
    srd(4, PWS, WS_BYTES)
    A("s_lshl_b32 s46, s44, 1")
    A("s_add_u32 s46, s46, s3")
    A("s_mul_i32 s46, s46, %d" % (KK * 4096))
    A("s_add_u32 s46, s46, %d" % WB)
    A("s_mul_i32 s47, s45, %d" % (KK * 4096))
    A("s_add_u32 s47, s47, %d" % XB)
    A("s_cmp_lt_u32 s3, 2")
    A("s_cselect_b32 s48, s46, s47")
    A("s_and_b32 s51, s3, 1")
    A("s_lshr_b32 s52, s3, 1")
    A("s_lshl_b32 s53, s51, 12")
    A("s_lshl_b32 s54, s52, 11")
    A("s_add_u32 s54, s54, 8192")
    A("v_lshlrev_b32 v2, 4, v0")
    A("v_add_u32 v3, s54, v2")
    A("v_add_u32 v2, s53, v2")
    ACC, F0, F1 = 8, 40, 64
    gemm_mainloop(KK, 8, 4, [0, 1024, 2048, 3072], [0, 1024], False, ACC, F0, F1)
    if res_from_x:
        srd(8, PX, 2048 * 1280)
        A("s_mov_b32 s55, 0")
    else:
        srd(8, PWS, WS_BYTES)
        A("s_mov_b32 s55, %d" % HH)
    if res_from_x:
        srd(12, PWS, WS_BYTES)
        A("s_mov_b32 s56, %d" % HH)
    else:
        srd(12, POUT, 2048 * 1280)
        A("s_mov_b32 s56, 0")
    A("s_lshl_b32 s57, s45, 6")
    A("s_lshl_b32 s58, s52, 5")
    A("s_add_u32 s57, s57, s58")
    A("s_mul_i32 s57, s57, 1280")
    A("s_lshl_b32 s58, s44, 8")
    A("s_add_u32 s57, s57, s58")
    A("s_lshl_b32 s58, s51, 7")
    A("s_add_u32 s57, s57, s58")
    A("s_add_u32 s55, s55, s57")
    A("s_add_u32 s56, s56, s57")
    A("v_and_b32 v4, 15, v0")
    A("v_lshrrev_b32 v5, 4, v0")
    A("v_mul_u32_u24 v4, 1280, v4")
    A("v_lshl_add_u32 v4, v5, 3, v4")
    for j in range(2):
        if j:
            A("s_add_u32 s55, s55, %d" % (16 * 1280))
        for i in range(4):
            A("buffer_load_dwordx2 %s, v4, s[8:11], s55 offen offset:%d" % (vr(F0 + (j * 4 + i) * 2, 2), i * 32))
    A("s_waitcnt vmcnt(0)")
    for j in range(2):
        if j:
            A("s_add_u32 s56, s56, %d" % (16 * 1280))
        for i in range(4):
            a = ACC + (i * 2 + j) * 4
            rr = F0 + (j * 4 + i) * 2
            for hh in range(2):
                A("v_cvt_pk_bf16_f32 v%d, v%d, v%d" % (a + 2 * hh, a + 2 * hh, a + 2 * hh + 1))
                A("v_and_b32 v%d, 0xffff0000, v%d" % (a + 2 * hh + 1, a + 2 * hh))
                A("v_lshlrev_b32 v%d, 16, v%d" % (a + 2 * hh, a + 2 * hh))
                A("v_lshlrev_b32 v6, 16, v%d" % (rr + hh))
                A("v_and_b32 v7, 0xffff0000, v%d" % (rr + hh))
                A("v_add_f32 v6, v6, v%d" % (a + 2 * hh))
                A("v_add_f32 v7, v7, v%d" % (a + 2 * hh + 1))
                A("v_cvt_pk_bf16_f32 v%d, v6, v7" % (rr + hh))
            A("buffer_store_dwordx2 %s, v4, s[12:15], s56 offen offset:%d" % (vr(rr, 2), i * 32))
    A.label("%s_end" % lab)
    kernel_end(lab, 96)

def gen_ln2():
    lab = "ln2_kernel"
    kernel_begin(lab)
    A("s_cmp_ge_u32 s2, 32")
    A("s_cbranch_scc1 ln2_end")
    load_ptrs()
    wave_id(3)
    A("s_waitcnt lgkmcnt(0)")
    srd(4, PWS, WS_BYTES)
    srd(8, PWS, WS_BYTES)
    A("s_lshl_b32 s44, s2, 2")
    A("s_add_u32 s44, s44, s3")
    A("s_mul_i32 s12, s44, %d" % (16 * 1280))
    A("s_add_u32 s12, s12, %d" % HH)
    A("s_mul_i32 s13, s2, %d" % (20 * 4096))
    A("s_lshl_b32 s46, s3, 10")
    A("s_add_u32 s13, s13, s46")
    A("s_add_u32 s13, s13, %d" % HN)
    emit_layernorm()
    A.label("ln2_end")
    kernel_end(lab, 128)

def gen_gateup():
    lab = "gateup_kernel"
    kernel_begin(lab)
    A("s_cmp_ge_u32 s2, 432")
    A("s_cbranch_scc1 gateup_end")
    load_ptrs()
    wave_id(3)
    sdiv(45, 2, 27, 46)
    A("s_mul_i32 s46, s45, 27")
    A("s_sub_u32 s44, s2, s46")
    A("s_waitcnt lgkmcnt(0)")
    srd(4, PWS, WS_BYTES)
    A("s_mul_i32 s46, s3, 27")
    A("s_add_u32 s46, s46, s44")
    A("s_mul_i32 s46, s46, %d" % (20 * 4096))
    A("s_add_u32 s46, s46, %d" % WGU)
    A("s_lshl_b32 s47, s45, 1")
    A("s_add_u32 s47, s47, s3")
    A("s_sub_u32 s47, s47, 2")
    A("s_mul_i32 s47, s47, %d" % (20 * 4096))
    A("s_add_u32 s47, s47, %d" % HN)
    A("s_cmp_lt_u32 s3, 2")
    A("s_cselect_b32 s48, s46, s47")
    A("s_and_b32 s51, s3, 1")
    A("s_lshr_b32 s52, s3, 1")
    A("s_lshl_b32 s53, s51, 11")
    A("s_lshl_b32 s54, s52, 12")
    A("s_add_u32 s54, s54, 8192")
    A("v_lshlrev_b32 v2, 4, v0")
    A("v_add_u32 v3, s54, v2")
    A("v_add_u32 v2, s53, v2")
    ACC, F0, F1 = 8, 72, 104
    gemm_mainloop(20, 8, 8, [0, 1024, 4096, 5120], [0, 1024, 2048, 3072], False, ACC, F0, F1)
    A("s_lshl_b32 s55, s45, 1")
    A("s_add_u32 s55, s55, s52")
    A("s_mul_i32 s55, s55, 54")
    A("s_lshl_b32 s56, s44, 1")
    A("s_add_u32 s55, s55, s56")
    A("s_add_u32 s55, s55, s51")
    A("s_lshl_b32 s55, s55, 12")
    A("s_add_u32 s55, s55, %d" % ACT)
    A("v_lshlrev_b32 v1, 4, v0")
    for j in range(4):
        d = F0 + 4 * j
        for i in range(2):
            g = ACC + (i * 4 + j) * 4
            u = ACC + ((i + 2) * 4 + j) * 4
            for hh in range(2):
                A("v_cvt_pk_bf16_f32 v4, v%d, v%d" % (g + 2 * hh, g + 2 * hh + 1))
                A("v_cvt_pk_bf16_f32 v5, v%d, v%d" % (u + 2 * hh, u + 2 * hh + 1))
                A("v_lshlrev_b32 v6, 16, v4")
                A("v_and_b32 v7, 0xffff0000, v4")
                A("v_lshlrev_b32 v4, 16, v5")
                A("v_and_b32 v5, 0xffff0000, v5")
                A("v_max_f32 v6, 0, v6")
                A("v_max_f32 v7, 0, v7")
                A("v_mul_f32 v6, v6, v4")
                A("v_mul_f32 v7, v7, v5")
                A("v_cvt_pk_bf16_f32 v%d, v6, v7" % (d + 2 * i + hh))
        A("buffer_store_dwordx4 %s, v1, s[4:7], s55 offen offset:%d" % (vr(d, 4), j * 1024))
    A.label("gateup_end")
    kernel_end(lab, 136)

def main():
    launches = [
        ("prep_kernel", K0_WGS, 256, 4 * 4608),
        ("qkv_kernel", 1536, 256, 65536),
        ("chain_kernel", 72, 256, 147456 + 12288),
        ("xattn_kernel", 512, 256, 0),
        ("oproj_kernel", 160, 256, 49152),
        ("ln2_kernel", 32, 256, 0),
        ("gateup_kernel", 432, 256, 65536),
        ("dproj_kernel", 160, 256, 49152),
    ]
    gen_prep()
    gen_qkv()
    gen_chain()
    gen_xattn()
    gen_proj("oproj_kernel", 128, WO, OO, True)
    gen_ln2()
    gen_gateup()
    gen_proj("dproj_kernel", 54, WD, ACT, False)
    out = []
    for (k, g, b, l) in launches:
        out.append("; @launch kernel=%s grid=(%d,1,1) block=(%d,1,1) lds=%d" % (k, g, b, l))
    out.append('.amdgcn_target "amdgcn-amd-amdhsa--gfx950"')
    out.append(".text")
    out += A.lines
    out.append('.section .rodata,"a"')
    for (label, vgpr, sgpr, agpr) in kernels:
        acc_off = (vgpr + 3) // 4 * 4
        out.append(".p2align 6")
        out.append(".amdhsa_kernel %s" % label)
        out.append("  .amdhsa_next_free_vgpr %d" % (acc_off + agpr if agpr else vgpr))
        out.append("  .amdhsa_next_free_sgpr %d" % sgpr)
        out.append("  .amdhsa_accum_offset %d" % acc_off)
        out.append("  .amdhsa_group_segment_fixed_size 0")
        out.append("  .amdhsa_kernarg_size 112")
        out.append("  .amdhsa_user_sgpr_count 2")
        out.append("  .amdhsa_user_sgpr_kernarg_segment_ptr 1")
        out.append("  .amdhsa_system_sgpr_workgroup_id_x 1")
        out.append(".end_amdhsa_kernel")
    path = sys.argv[1] if len(sys.argv) > 1 else "cdna_kernels/%s.s" % NAME
    open(path, "w").write("\n".join(out) + "\n")
    import json
    json.dump(dict(XN=XN, WQKV=WQKV, WO=WO, WGU=WGU, WD=WD, QX=QX, KX=KX, VX=VX, MEM=MEM, OM=OM, KM=KM, VM=VM,
                   OO=OO, HH=HH, HN=HN, ACT=ACT), open("layout.json", "w"))

if __name__ == "__main__":
    main()
```
